```python
import torch

def _softmax(x, axis=-1):
    return torch.softmax(x, dim=axis)
def _gelu(x):
    return torch.nn.functional.gelu(x, approximate="tanh")
def _silu(x):
    return torch.nn.functional.silu(x)
def _sigmoid(x):
    return torch.sigmoid(x)
def _layernorm(x, axis=-1, eps=1e-5):
    m = x.mean(dim=axis, keepdim=True)
    v = x.var(dim=axis, keepdim=True, unbiased=False)
    return (x - m) / torch.sqrt(v + eps)
def _scatter_add(tgt, idx, src, axis=0):
    return tgt.clone().index_add_(axis, idx, src)
def _segment_sum(src, seg, n):
    out = torch.zeros((n,) + src.shape[1:], dtype=src.dtype)
    return out.index_add_(0, seg, src)
def _pad(x, pw):
    flat = tuple(v for pair in reversed(pw) for v in pair)
    return torch.nn.functional.pad(x, flat)

kernel_name = 'sequential_preLN__mha_block__glu_gated_swiglu__prompt'

def setup_inputs():

    _w = (lambda a: (lambda t: t.to(torch.bfloat16) if t.is_floating_point() else t)(torch.as_tensor(a)))
    def _A_setup():
        B, S, D, H = 1, 2048, 640, 32
        return {
            "x": _w((lambda *s: torch.randn(*s, dtype=torch.bfloat16) * 0.05)(B, S, D)),
            "wqkv": _w((lambda *s: torch.randn(*s, dtype=torch.bfloat16) * 0.05)(D, 3 * D)),
            "wo": _w((lambda *s: torch.randn(*s, dtype=torch.bfloat16) * 0.05)(D, D)),
        }
    _A_in = _A_setup()

    def _B_setup():
        B, S, D, F = 1, 2048, 640, 1536
        return {
            "x": _w((lambda *s: torch.randn(*s, dtype=torch.bfloat16) * 0.05)(B, S, D)),
            "w1": _w((lambda *s: torch.randn(*s, dtype=torch.bfloat16) * 0.4)(D, F) * (2.0 / D) ** 0.5),
            "w3": _w((lambda *s: torch.randn(*s, dtype=torch.bfloat16) * 0.4)(D, F) * (2.0 / D) ** 0.5),
            "w2": _w((lambda *s: torch.randn(*s, dtype=torch.bfloat16) * 0.4)(F, D) * (2.0 / F) ** 0.5),
        }
    _B_in = _B_setup()

    return {
        "A_x": _A_in["x"],
        "A_wqkv": _A_in["wqkv"],
        "A_wo": _A_in["wo"],
        "B_x": _B_in["x"],
        "B_w1": _B_in["w1"],
        "B_w3": _B_in["w3"],
        "B_w2": _B_in["w2"],
    }

def reference(A_x, A_wqkv, A_wo, B_x, B_w1, B_w3, B_w2):
    def _A_ref(x, wqkv, wo):
        B, S, D = x.shape
        H = 32
        Dh = D // H
        qkv = (lambda x, *d: x.permute(*d))((x @ wqkv).reshape(B, S, 3, H, Dh), 2, 0, 3, 1, 4)
        q, k, v = qkv[0], qkv[1], qkv[2]
        scores = torch.einsum("bhqd,bhkd->bhqk", q, k) * (Dh ** -0.5)
        p = _softmax(scores, axis=-1)
        o = torch.einsum("bhqk,bhkd->bhqd", p, v)
        return (lambda x, *d: x.permute(*d))(o, 0, 2, 1, 3).reshape(B, S, D) @ wo

    def _B_ref(x, w1, w3, w2):
        gate = torch.einsum("bsd,df->bsf", x, w1)
        up = torch.einsum("bsd,df->bsf", x, w3)
        h = _silu(gate) * up
        out = torch.einsum("bsf,fd->bsd", h, w2)
        return out

    x = A_x
    h = x + _A_ref(_layernorm(x, axis=-1), A_wqkv, A_wo)
    h2 = h + _B_ref(_layernorm(h, axis=-1), B_w1, B_w3, B_w2)
    return h2
```

```python
import re

TRANS = ("v_exp_f32", "v_log_f32", "v_rcp_f32", "v_rsq_f32", "v_sqrt_f32", "v_sin_f32", "v_cos_f32", "v_exp_f16", "v_rcp_iflag_f32")

def regs_of(tok):
    tok = tok.strip()
    tok = re.sub(r"^-", "", tok)
    tok = re.sub(r"^abs\((.*)\)$", r"\1", tok)
    tok = re.sub(r"^\|(.*)\|$", r"\1", tok)
    m = re.fullmatch(r"([vas])(\d+)", tok)
    if m:
        return {(m.group(1), int(m.group(2)))}
    m = re.fullmatch(r"([vas])\[(\d+):(\d+)\]", tok)
    if m:
        return {(m.group(1), i) for i in range(int(m.group(2)), int(m.group(3)) + 1)}
    if tok in ("vcc", "vcc_lo", "vcc_hi"):
        return {("vcc", 0)}
    if tok in ("exec", "exec_lo", "exec_hi"):
        return {("exec", 0)}
    if tok == "m0":
        return {("m0", 0)}
    return set()

def split_ops(s):
    out, depth, cur = [], 0, ""
    for ch in s:
        if ch in "[(":
            depth += 1
        if ch in "])":
            depth -= 1
        if ch == "," and depth == 0:
            out.append(cur); cur = ""
        else:
            cur += ch
    if cur.strip():
        out.append(cur)
    return [o.strip() for o in out]

class Ins:
    def __init__(self, text):
        self.text = text
        t = text.split(";")[0].strip()
        parts = t.split(None, 1)
        self.op = parts[0]
        rest = parts[1] if len(parts) > 1 else ""
        ops = split_ops(rest)
        toks = []
        for o in ops:
            toks.append(o.split()[0] if o.split() else o)
        self.mods = rest
        op = self.op
        self.w = set(); self.r = set()
        self.srcC = set(); self.srcAB = set()
        self.is_mfma = op.startswith("v_mfma")
        self.is_valu = op.startswith("v_") and not self.is_mfma
        self.is_trans = op.split("_e32")[0].split("_e64")[0] in TRANS
        self.is_vmem = op.startswith(("buffer_", "global_", "flat_"))
        self.is_ds = op.startswith("ds_")
        self.is_salu = op.startswith("s_")
        self.is_lds_dma = self.is_vmem and (" lds" in " " + rest or "load_lds" in op)
        self.passes = 0
        self.nop = 0
        if op == "s_nop":
            self.nop = int(toks[0], 0) + 1
        if self.is_mfma:
            self.w = regs_of(toks[0]); self.srcAB = regs_of(toks[1]) | regs_of(toks[2]); self.srcC = regs_of(toks[3])
            self.r = self.srcAB | self.srcC
            self.passes = 8 if "32x32x16" in op or "32x32x8" in op else (4 if "16x16x32" in op or "16x16x16" in op else 16)
        elif self.is_valu:
            if op.startswith("v_cmp"):
                self.w = regs_of(toks[0]);
                if op.startswith("v_cmpx"): self.w |= {("exec", 0)}
                for t_ in toks[1:]: self.r |= regs_of(t_)
            elif op.startswith(("v_permlane32_swap", "v_permlane16_swap", "v_swap")):
                self.w = regs_of(toks[0]) | regs_of(toks[1]); self.r = set(self.w)
            elif op.startswith(("v_add_co", "v_sub_co", "v_addc_co", "v_subb_co", "v_div_scale", "v_mad_u64")):
                self.w = regs_of(toks[0]) | regs_of(toks[1])
                for t_ in toks[2:]: self.r |= regs_of(t_)
            else:
                self.w = regs_of(toks[0])
                for t_ in toks[1:]: self.r |= regs_of(t_)
                if op.startswith(("v_fmac", "v_dot2c", "v_pk_fmac", "v_writelane")) or "UNUSED_PRESERVE" in rest:
                    self.r |= self.w
                if op.startswith("v_cndmask") and len(toks) == 3: self.r |= {("vcc", 0)}
        elif self.is_vmem:
            if "load" in op and not self.is_lds_dma:
                self.w = regs_of(toks[0])
                for t_ in toks[1:]: self.r |= regs_of(t_)
                if "d16" in op: self.r |= self.w
            else:
                for t_ in toks: self.r |= regs_of(t_)
                if self.is_lds_dma: self.r |= {("m0", 0)}
                if "atomic" in op and " sc0" in " " + rest: self.w = regs_of(toks[0])
        elif self.is_ds:
            if op.startswith(("ds_read", "ds_bpermute", "ds_permute", "ds_swizzle")) or "_rtn" in op:
                self.w = regs_of(toks[0])
                for t_ in toks[1:]: self.r |= regs_of(t_)
            else:
                for t_ in toks: self.r |= regs_of(t_)
        elif self.is_salu:
            if op.startswith(("s_cmp", "s_cbranch", "s_branch", "s_waitcnt", "s_barrier", "s_nop", "s_endpgm", "s_setprio", "s_sleep", "s_bitcmp")):
                for t_ in toks: self.r |= regs_of(t_)
            else:
                self.w = regs_of(toks[0]) if toks else set()
                for t_ in toks[1:]: self.r |= regs_of(t_)
                if "saveexec" in op: self.w |= {("exec", 0)}
        self.wide_store = self.is_vmem and ("store_dwordx3" in op or "store_dwordx4" in op)
        self.store_data = regs_of(toks[0]) if (self.wide_store and op.startswith("buffer")) else (regs_of(toks[1]) if self.wide_store else set())

def vg(s):
    return {x for x in s if x[0] in "va"}
def sg(s):
    return {x for x in s if x[0] in ("s", "vcc")}

def need(p, c):
    n = 0
    if p.is_valu:
        if c.is_mfma and vg(p.w) & c.r: n = max(n, 2)
        if c.is_mfma and ("exec", 0) in p.w: n = max(n, 4)
        if p.is_trans and c.is_valu and not c.is_trans and vg(p.w) & c.r: n = max(n, 1)
        if p.is_trans and (c.is_vmem or c.is_ds) and vg(p.w) & c.r: n = max(n, 1)
        if sg(p.w):
            if c.is_vmem and sg(p.w) & c.r: n = max(n, 5)
            if c.is_valu and sg(p.w) & c.r:
                n = max(n, 4 if c.op.startswith(("v_readlane", "v_writelane", "v_div_fmas")) else 2)
            if c.is_salu and sg(p.w) & c.r: n = max(n, 1)
        if c.op.startswith(("v_readlane", "v_readfirstlane")) and vg(p.w) & c.r: n = max(n, 1)
        if c.op.startswith("v_permlane") and vg(p.w) & c.r: n = max(n, 2)
        if c.is_valu and ("dpp" in c.op or "row_" in c.mods or "quad_perm" in c.mods or "wave_" in c.mods) and vg(p.w) & c.r: n = max(n, 2)
        if ("exec", 0) in p.w:
            if c.op.startswith(("v_readlane", "v_readfirstlane", "v_writelane", "v_permlane")): n = max(n, 4)
            if c.is_valu and ("dpp" in c.op or "row_" in c.mods): n = max(n, 5)
        if ("sdwa" in p.op or "op_sel" in p.mods) and c.is_valu and vg(p.w) & (c.r | c.w): n = max(n, 1)
        if p.op.startswith("v_dot") :
            if c.op == p.op and (vg(p.w) & c.r) and not (p.w == c.w and not (vg(p.w) & (c.r - c.w))): n = max(n, 3)
            elif c.op != p.op and vg(p.w) & (c.r | c.w): n = max(n, 3)
    if p.is_mfma:
        idx = {2: 0, 4: 1, 8: 2, 16: 3}[p.passes]
        if c.is_mfma:
            if p.w & c.srcAB: n = max(n, (5, 8, 12, 20)[idx])
            if p.w & c.srcC:
                if p.w == c.srcC and p.passes == c.passes: n = max(n, (2, 0, 0, 0)[idx])
                else: n = max(n, (4, 6, 10, 18)[idx])
            elif p.w & c.w: n = max(n, (4, 6, 10, 18)[idx])
        elif c.is_valu or c.is_vmem or c.is_ds:
            if p.w & (c.r | c.w): n = max(n, (5, 8, 12, 20)[idx])
            if c.is_valu and p.srcC & c.w: n = max(n, (1, 3, 7, 15)[idx])
    if p.is_salu and ("m0", 0) in p.w and (c.is_lds_dma or "addtid" in c.op): n = max(n, 1)
    if p.wide_store and p.store_data & c.w: n = max(n, 2)
    return n

class Kern:
    def __init__(self, name):
        self.name = name
        self.items = []
        self.nlabel = 0
        self.nv = 1
        self.ns = 4
    def I(self, text):
        for ln in text.strip().split("\n"):
            ln = ln.strip()
            if not ln or ln.startswith(";"):
                if ln: self.items.append(("c", ln))
                continue
            if re.fullmatch(r"[\w.$]+:", ln):
                self.items.append(("l", ln[:-1])); continue
            if ln.startswith("."):
                self.items.append(("c", ln)); continue
            self.items.append(("i", Ins(ln)))
    def L(self, label):
        self.items.append(("l", label))
    def C(self, text):
        self.items.append(("c", "; " + text))
    def newlabel(self, base="L"):
        self.nlabel += 1
        return f"{self.name}_{base}{self.nlabel}"
    def finalize(self):
        LOOK = 22
        items = self.items
        labels = {x[1]: i for i, x in enumerate(items) if x[0] == "l"}
        branch_to = {}
        for i, x in enumerate(items):
            if x[0] == "i" and x[1].op.startswith(("s_cbranch", "s_branch")):
                tgt = x[1].text.split(";")[0].split()[1]
                branch_to.setdefault(labels[tgt], []).append(i)
        extra = [0] * len(items)
        for i, x in enumerate(items):
            if x[0] != "i": continue
            c = x[1]
            worst = 0
            stack = [(i - 1, 0, False)]
            seen = set()
            while stack:
                j, dist, via = stack.pop()
                while j >= 0 and dist < LOOK:
                    if (j, dist, via) in seen: break
                    seen.add((j, dist, via))
                    y = items[j]
                    if y[0] == "l":
                        for b in branch_to.get(j, []):
                            stack.append((b, dist, True))
                        j -= 1; continue
                    if y[0] == "c":
                        j -= 1; continue
                    p = y[1]
                    if p.op in ("s_branch", "s_endpgm") and not via:
                        break
                    via = False
                    nd = need(p, c)
                    if nd > dist: worst = max(worst, nd - dist)
                    dist += (p.nop if p.nop else 1) + extra[j]
                    j -= 1
            extra[i] = worst
        out = []
        self.nops_inserted = 0
        for i, x in enumerate(items):
            w = extra[i]
            while w > 0:
                k = min(w, 16)
                out.append(("i", Ins(f"s_nop {k-1}")))
                self.nops_inserted += 1
                w -= k
            out.append(x)
        self.items = out
        return self
    def v(self, n=1, align=None):
        al = align or (1 if n == 1 else 2)
        b = (self.nv + al - 1) // al * al
        self.nv = b + n
        return b
    def s(self, n=1, align=None):
        al = align or (1 if n == 1 else (2 if n == 2 else 4))
        b = (self.ns + al - 1) // al * al
        self.ns = b + n
        assert self.ns <= 100
        return b
    def text(self):
        out = []
        for k, x in self.items:
            if k == "i": out.append("    " + x.text)
            elif k == "l": out.append(x + ":")
            else: out.append("    " + x if not x.startswith(".") else x)
        return "\n".join(out)
    def maxreg(self, kind):
        m = -1
        for k, x in self.items:
            if k == "i":
                for r in x.r | x.w:
                    if r[0] == kind: m = max(m, r[1])
        return m

def emit_file(header_comments, kernels, launches):
    out = list(header_comments)
    for (name, grid, block, lds) in launches:
        out.append(f"; @launch kernel={name} grid=({grid},1,1) block=({block},1,1) lds={lds}")
    out.append('.amdgcn_target "amdgcn-amd-amdhsa--gfx950"')
    out.append(".text")
    for k in kernels:
        out.append(f".globl {k.name}\n.p2align 8\n.type {k.name},@function\n{k.name}:")
        out.append(k.text())
    out.append('.section .rodata,"a"')
    for k in kernels:
        nv = k.maxreg("v") + 1
        na = k.maxreg("a") + 1
        acc = max(4, (nv + 3) // 4 * 4)
        tot = acc + na if na else nv
        ns = max(k.maxreg("s") + 1, 16)
        out.append(f""".p2align 6
.amdhsa_kernel {k.name}
  .amdhsa_next_free_vgpr {tot}
  .amdhsa_next_free_sgpr {ns}
  .amdhsa_accum_offset {acc}
  .amdhsa_group_segment_fixed_size 0
  .amdhsa_kernarg_size 80
  .amdhsa_user_sgpr_count 2
  .amdhsa_user_sgpr_kernarg_segment_ptr 1
  .amdhsa_system_sgpr_workgroup_id_x 1
.end_amdhsa_kernel""")
    return "\n".join(out) + "\n"

def V(b, n=1):
    return f"v{b}" if n == 1 else f"v[{b}:{b+n-1}]"
def S(b, n=1):
    return f"s{b}" if n == 1 else f"s[{b}:{b+n-1}]"
```

```python
from asmlib import *
import struct, math

WS_QKV = 0x0000000
WS_O   = 0x1000000
WS_H1  = 0x1400000
WS_HH  = 0x1800000
WS_WO  = 0x2000000
WS_W13 = 0x2200000
WS_W2  = 0x2800000
BIG = 0x40000000

def f32(x):
    return "0x%08x" % struct.unpack("<I", struct.pack("<f", x))[0]

def srd(k, dst, ptr, off_s=None, off_imm=0, size=0):
    if off_s is not None:
        k.I(f"s_add_u32 {S(dst)}, {S(ptr)}, {S(off_s)}")
        k.I(f"s_addc_u32 {S(dst+1)}, {S(ptr+1)}, 0")
        if off_imm:
            k.I(f"s_add_u32 {S(dst)}, {S(dst)}, {off_imm}")
            k.I(f"s_addc_u32 {S(dst+1)}, {S(dst+1)}, 0")
    elif off_imm:
        k.I(f"s_add_u32 {S(dst)}, {S(ptr)}, {off_imm}")
        k.I(f"s_addc_u32 {S(dst+1)}, {S(ptr+1)}, 0")
    else:
        k.I(f"s_mov_b32 {S(dst)}, {S(ptr)}")
        k.I(f"s_mov_b32 {S(dst+1)}, {S(ptr+1)}")
    if isinstance(size, str):
        k.I(f"s_mov_b32 {S(dst+2)}, {size}")
    else:
        k.I(f"s_mov_b32 {S(dst+2)}, {size}")
    k.I(f"s_mov_b32 {S(dst+3)}, 0x20000")
```

```python
import sys
from common import *
import importlib
def build(out, which=("k1","k2","k3","k4","k5"), opts=None):
    ks = []; ls = []
    for w in which:
        mod = importlib.import_module({"k1":"k1","k2":"k2","k3":"kg","k4":"kg","k5":"kg","k0":"k0"}[w])
        kk, l = getattr(mod, "gen_"+w)()
        ks.append(kk); ls.append(l)
    hdr = ["; preLN MHA block + SwiGLU FFN, gfx950; generated by my own generator scripts (gen/*.py)"]
    txt = emit_file(hdr, ks, ls)
    open(out, "w").write(txt)
    for kk in ks:
        print(kk.name, "vgpr", kk.maxreg("v")+1, "sgpr", kk.maxreg("s")+1, "nops", kk.nops_inserted, "instrs", sum(1 for x in kk.items if x[0]=="i"))
if __name__ == "__main__":
    build(sys.argv[1], sys.argv[2].split(","))
```

```python
import re

TRANS = ("v_exp_f32", "v_log_f32", "v_rcp_f32", "v_rsq_f32", "v_sqrt_f32", "v_sin_f32", "v_cos_f32", "v_exp_f16", "v_rcp_iflag_f32")

def regs_of(tok):
    tok = tok.strip()
    tok = re.sub(r"^-", "", tok)
    tok = re.sub(r"^abs\((.*)\)$", r"\1", tok)
    tok = re.sub(r"^\|(.*)\|$", r"\1", tok)
    m = re.fullmatch(r"([vas])(\d+)", tok)
    if m:
        return {(m.group(1), int(m.group(2)))}
    m = re.fullmatch(r"([vas])\[(\d+):(\d+)\]", tok)
    if m:
        return {(m.group(1), i) for i in range(int(m.group(2)), int(m.group(3)) + 1)}
    if tok in ("vcc", "vcc_lo", "vcc_hi"):
        return {("vcc", 0)}
    if tok in ("exec", "exec_lo", "exec_hi"):
        return {("exec", 0)}
    if tok == "m0":
        return {("m0", 0)}
    return set()

def split_ops(s):
    out, depth, cur = [], 0, ""
    for ch in s:
        if ch in "[(":
            depth += 1
        if ch in "])":
            depth -= 1
        if ch == "," and depth == 0:
            out.append(cur); cur = ""
        else:
            cur += ch
    if cur.strip():
        out.append(cur)
    return [o.strip() for o in out]

class Ins:
    def __init__(self, text):
        self.text = text
        t = text.split(";")[0].strip()
        parts = t.split(None, 1)
        self.op = parts[0]
        rest = parts[1] if len(parts) > 1 else ""
        ops = split_ops(rest)
        toks = []
        for o in ops:
            toks.append(o.split()[0] if o.split() else o)
        self.mods = rest
        op = self.op
        self.w = set(); self.r = set()
        self.srcC = set(); self.srcAB = set()
        self.is_mfma = op.startswith("v_mfma")
        self.is_valu = op.startswith("v_") and not self.is_mfma
        self.is_trans = op.split("_e32")[0].split("_e64")[0] in TRANS
        self.is_vmem = op.startswith(("buffer_", "global_", "flat_"))
        self.is_ds = op.startswith("ds_")
        self.is_salu = op.startswith("s_")
        self.is_lds_dma = self.is_vmem and (" lds" in " " + rest or "load_lds" in op)
        self.passes = 0
        self.nop = 0
        if op == "s_nop":
            self.nop = int(toks[0], 0) + 1
        if self.is_mfma:
            self.w = regs_of(toks[0]); self.srcAB = regs_of(toks[1]) | regs_of(toks[2]); self.srcC = regs_of(toks[3])
            self.r = self.srcAB | self.srcC
            self.passes = 8 if "32x32x16" in op or "32x32x8" in op else (4 if "16x16x32" in op or "16x16x16" in op else 16)
        elif self.is_valu:
            if op.startswith("v_cmp"):
                self.w = regs_of(toks[0]);
                if op.startswith("v_cmpx"): self.w |= {("exec", 0)}
                for t_ in toks[1:]: self.r |= regs_of(t_)
            elif op.startswith(("v_permlane32_swap", "v_permlane16_swap", "v_swap")):
                self.w = regs_of(toks[0]) | regs_of(toks[1]); self.r = set(self.w)
            elif op.startswith(("v_add_co", "v_sub_co", "v_addc_co", "v_subb_co", "v_div_scale", "v_mad_u64")):
                self.w = regs_of(toks[0]) | regs_of(toks[1])
                for t_ in toks[2:]: self.r |= regs_of(t_)
            else:
                self.w = regs_of(toks[0])
                for t_ in toks[1:]: self.r |= regs_of(t_)
                if op.startswith(("v_fmac", "v_dot2c", "v_pk_fmac", "v_writelane")) or "UNUSED_PRESERVE" in rest:
                    self.r |= self.w
                if op.startswith("v_cndmask") and len(toks) == 3: self.r |= {("vcc", 0)}
        elif self.is_vmem:
            if "load" in op and not self.is_lds_dma:
                self.w = regs_of(toks[0])
                for t_ in toks[1:]: self.r |= regs_of(t_)
                if "d16" in op: self.r |= self.w
            else:
                for t_ in toks: self.r |= regs_of(t_)
                if self.is_lds_dma: self.r |= {("m0", 0)}
                if "atomic" in op and " sc0" in " " + rest: self.w = regs_of(toks[0])
        elif self.is_ds:
            if op.startswith(("ds_read", "ds_bpermute", "ds_permute", "ds_swizzle")) or "_rtn" in op:
                self.w = regs_of(toks[0])
                for t_ in toks[1:]: self.r |= regs_of(t_)
            else:
                for t_ in toks: self.r |= regs_of(t_)
        elif self.is_salu:
            if op.startswith(("s_cmp", "s_cbranch", "s_branch", "s_waitcnt", "s_barrier", "s_nop", "s_endpgm", "s_setprio", "s_sleep", "s_bitcmp")):
                for t_ in toks: self.r |= regs_of(t_)
            else:
                self.w = regs_of(toks[0]) if toks else set()
                for t_ in toks[1:]: self.r |= regs_of(t_)
                if "saveexec" in op: self.w |= {("exec", 0)}
        self.wide_store = self.is_vmem and ("store_dwordx3" in op or "store_dwordx4" in op)
        self.store_data = regs_of(toks[0]) if (self.wide_store and op.startswith("buffer")) else (regs_of(toks[1]) if self.wide_store else set())

def vg(s):
    return {x for x in s if x[0] in "va"}
def sg(s):
    return {x for x in s if x[0] in ("s", "vcc")}

def need(p, c):
    n = 0
    if p.is_valu:
        if c.is_mfma and vg(p.w) & c.r: n = max(n, 2)
        if c.is_mfma and ("exec", 0) in p.w: n = max(n, 4)
        if p.is_trans and c.is_valu and not c.is_trans and vg(p.w) & c.r: n = max(n, 1)
        if p.is_trans and (c.is_vmem or c.is_ds) and vg(p.w) & c.r: n = max(n, 1)
        if sg(p.w):
            if c.is_vmem and sg(p.w) & c.r: n = max(n, 5)
            if c.is_valu and sg(p.w) & c.r:
                n = max(n, 4 if c.op.startswith(("v_readlane", "v_writelane", "v_div_fmas")) else 2)
            if c.is_salu and sg(p.w) & c.r: n = max(n, 1)
        if c.op.startswith(("v_readlane", "v_readfirstlane")) and vg(p.w) & c.r: n = max(n, 1)
        if c.op.startswith("v_permlane") and vg(p.w) & c.r: n = max(n, 2)
        if c.is_valu and ("dpp" in c.op or "row_" in c.mods or "quad_perm" in c.mods or "wave_" in c.mods) and vg(p.w) & c.r: n = max(n, 2)
        if ("exec", 0) in p.w:
            if c.op.startswith(("v_readlane", "v_readfirstlane", "v_writelane", "v_permlane")): n = max(n, 4)
            if c.is_valu and ("dpp" in c.op or "row_" in c.mods): n = max(n, 5)
        if ("sdwa" in p.op or "op_sel" in p.mods) and c.is_valu and vg(p.w) & (c.r | c.w): n = max(n, 1)
        if p.op.startswith("v_dot") :
            if c.op == p.op and (vg(p.w) & c.r) and not (p.w == c.w and not (vg(p.w) & (c.r - c.w))): n = max(n, 3)
            elif c.op != p.op and vg(p.w) & (c.r | c.w): n = max(n, 3)
    if p.is_mfma:
        idx = {2: 0, 4: 1, 8: 2, 16: 3}[p.passes]
        if c.is_mfma:
            if p.w & c.srcAB: n = max(n, (5, 8, 12, 20)[idx])
            if p.w & c.srcC:
                if p.w == c.srcC and p.passes == c.passes: n = max(n, (2, 0, 0, 0)[idx])
                else: n = max(n, (4, 6, 10, 18)[idx])
            elif p.w & c.w: n = max(n, (4, 6, 10, 18)[idx])
        elif c.is_valu or c.is_vmem or c.is_ds:
            if p.w & (c.r | c.w): n = max(n, (5, 8, 12, 20)[idx])
            if c.is_valu and p.srcC & c.w: n = max(n, (1, 3, 7, 15)[idx])
    if p.is_salu and ("m0", 0) in p.w and (c.is_lds_dma or "addtid" in c.op): n = max(n, 1)
    if p.wide_store and p.store_data & c.w: n = max(n, 2)
    return n

import os
XDROP = [p for p in os.environ.get("XDROP", "").split(",") if p]
PROF = {"on": False, "n": 0}
class Kern:
    def stamp(self, i, rt=False):
        if not PROF["on"]: return
        self.I(f"s_mem{'real' if rt else ''}time s[{76+2*i}:{77+2*i}]\ns_waitcnt lgkmcnt(0)")
    def flush_stamps(self):
        self.stamp(11, True)
        self.stamp(10)
        t = ["s_load_dwordx2 s[72:73], s[0:1], 72", "s_mov_b64 exec, -1", "v_lshrrev_b32 v1, 6, v0", "s_nop 1", "v_readfirstlane_b32 s3, v1",
             "v_and_b32 v2, 63, v0", "v_lshlrev_b32 v2, 2, v2", "v_mov_b32 v1, 0", "s_lshl_b32 s2, s2, 4", "s_add_u32 s2, s2, s3", "s_lshl_b32 s2, s2, 6"]
        for i in range(12): t.append(f"v_writelane_b32 v1, s{76+2*i}, {i}")
        t += ["s_getreg_b32 s3, hwreg(HW_REG_XCC_ID)", "v_writelane_b32 v1, s3, 12", "s_getreg_b32 s3, hwreg(HW_REG_HW_ID)", "v_writelane_b32 v1, s3, 13",
              "s_waitcnt lgkmcnt(0)", f"s_add_u32 s72, s72, {0x3000000 + self.kidx * 0x100000}", "s_addc_u32 s73, s73, 0", "s_mov_b32 s74, 0x100000", "s_mov_b32 s75, 0x20000",
              "s_mov_b64 exec, 0xffff", "s_nop 4", "buffer_store_dword v1, v2, s[72:75], s2 offen"]
        for x in t: self.items.append(("i", Ins(x)))
    def __init__(self, name):
        self.kidx = PROF["n"]; PROF["n"] += 1
        self.name = name
        self.items = []
        self.nlabel = 0
        self.nv = 1
        self.ns = 4
    def I(self, text):
        for ln in text.strip().split("\n"):
            ln = ln.strip()
            if not ln or ln.startswith(";"):
                if ln: self.items.append(("c", ln))
                continue
            if re.fullmatch(r"[\w.$]+:", ln):
                self.items.append(("l", ln[:-1])); continue
            if ln.startswith("."):
                self.items.append(("c", ln)); continue
            if any(re.search(p, ln) for p in XDROP): continue
            if ln.startswith("buffer_store") and os.environ.get("ST") and "keep" not in ln:
                ln = ln.split(";")[0].rstrip() + " " + os.environ["ST"].replace("_", " ")
            if ln == "s_endpgm" and PROF["on"]: self.flush_stamps()
            self.items.append(("i", Ins(ln)))
    def L(self, label):
        self.items.append(("l", label))
    def C(self, text):
        self.items.append(("c", "; " + text))
    def newlabel(self, base="L"):
        self.nlabel += 1
        return f"{self.name}_{base}{self.nlabel}"
    def finalize(self):
        LOOK = 22
        items = self.items
        labels = {x[1]: i for i, x in enumerate(items) if x[0] == "l"}
        branch_to = {}
        for i, x in enumerate(items):
            if x[0] == "i" and x[1].op.startswith(("s_cbranch", "s_branch")):
                tgt = x[1].text.split(";")[0].split()[1]
                branch_to.setdefault(labels[tgt], []).append(i)
        extra = [0] * len(items)
        for i, x in enumerate(items):
            if x[0] != "i": continue
            c = x[1]
            worst = 0
            stack = [(i - 1, 0, False)]
            seen = set()
            while stack:
                j, dist, via = stack.pop()
                while j >= 0 and dist < LOOK:
                    if (j, dist, via) in seen: break
                    seen.add((j, dist, via))
                    y = items[j]
                    if y[0] == "l":
                        for b in branch_to.get(j, []):
                            stack.append((b, dist, True))
                        j -= 1; continue
                    if y[0] == "c":
                        j -= 1; continue
                    p = y[1]
                    if p.op in ("s_branch", "s_endpgm") and not via:
                        break
                    via = False
                    nd = need(p, c)
                    if nd > dist: worst = max(worst, nd - dist)
                    dist += (p.nop if p.nop else 1) + extra[j]
                    j -= 1
            extra[i] = worst
        out = []
        self.nops_inserted = 0
        for i, x in enumerate(items):
            w = extra[i]
            while w > 0:
                k = min(w, 16)
                out.append(("i", Ins(f"s_nop {k-1}")))
                self.nops_inserted += 1
                w -= k
            out.append(x)
        self.items = out
        return self
    def v(self, n=1, align=None):
        al = align or (1 if n == 1 else 2)
        b = (self.nv + al - 1) // al * al
        self.nv = b + n
        return b
    def s(self, n=1, align=None):
        al = align or (1 if n == 1 else (2 if n == 2 else 4))
        b = (self.ns + al - 1) // al * al
        self.ns = b + n
        assert self.ns <= 100
        return b
    def rename(self, new):
        old = self.name
        it = []
        for k, x in self.items:
            if k == "i": it.append((k, Ins(x.text.replace(old, new))))
            else: it.append((k, x.replace(old, new)))
        self.items = it; self.name = new
    def text(self):
        out = []
        for k, x in self.items:
            if k == "i": out.append("    " + x.text)
            elif k == "l": out.append(x + ":")
            else: out.append("    " + x if not x.startswith(".") else x)
        return "\n".join(out)
    def maxreg(self, kind):
        m = -1
        for k, x in self.items:
            if k == "i":
                for r in x.r | x.w:
                    if r[0] == kind: m = max(m, r[1])
        return m

def emit_file(header_comments, kernels, launches):
    out = list(header_comments)
    for (name, grid, block, lds) in launches:
        out.append(f"; @launch kernel={name} grid=({grid},1,1) block=({block},1,1) lds={lds}")
    out.append('.amdgcn_target "amdgcn-amd-amdhsa--gfx950"')
    out.append(".text")
    for k in kernels:
        out.append(f".globl {k.name}\n.p2align 8\n.type {k.name},@function\n{k.name}:")
        out.append(k.text())
    out.append('.section .rodata,"a"')
    for k in kernels:
        nv = k.maxreg("v") + 1
        na = k.maxreg("a") + 1
        acc = max(4, (nv + 3) // 4 * 4)
        tot = acc + na if na else nv
        ns = max(k.maxreg("s") + 1, 16)
        out.append(f""".p2align 6
.amdhsa_kernel {k.name}
  .amdhsa_next_free_vgpr {tot}
  .amdhsa_next_free_sgpr {ns}
  .amdhsa_accum_offset {acc}
  .amdhsa_group_segment_fixed_size 0
  .amdhsa_kernarg_size 80
  .amdhsa_user_sgpr_count 2
  .amdhsa_user_sgpr_kernarg_segment_ptr 1
  .amdhsa_system_sgpr_workgroup_id_x 1
.end_amdhsa_kernel""")
    return "\n".join(out) + "\n"

def V(b, n=1):
    return f"v{b}" if n == 1 else f"v[{b}:{b+n-1}]"
def S(b, n=1):
    return f"s{b}" if n == 1 else f"s[{b}:{b+n-1}]"
```

```python
from asmlib import *
import struct, math

WS_QK  = 0x0000000
WS_VT  = 0x0500000
VT_HEAD = 256 * 336
WS_O   = 0x0800000
WS_H1  = 0x0B00000
WS_HH  = 0x0E00000
WS_WG  = 0x1400000
WG_STRIDE = 0x250000
WG_WO  = 0
WG_W13 = 409600
WG_W2  = 409600 + 983040
WG_CS  = 409600 + 2 * 983040
WG_SIZE = WG_CS + 768 * 40
WS_RS  = 0x2700000
WS_S1  = 0x2740000
BIG = 0x40000000

def f32(x):
    return "0x%08x" % struct.unpack("<I", struct.pack("<f", x))[0]

def srd(k, dst, ptr, off_s=None, off_imm=0, size=0):
    if off_s is not None:
        k.I(f"s_add_u32 {S(dst)}, {S(ptr)}, {S(off_s)}")
        k.I(f"s_addc_u32 {S(dst+1)}, {S(ptr+1)}, 0")
        if off_imm:
            k.I(f"s_add_u32 {S(dst)}, {S(dst)}, {off_imm}")
            k.I(f"s_addc_u32 {S(dst+1)}, {S(dst+1)}, 0")
    elif off_imm:
        k.I(f"s_add_u32 {S(dst)}, {S(ptr)}, {off_imm}")
        k.I(f"s_addc_u32 {S(dst+1)}, {S(ptr+1)}, 0")
    else:
        k.I(f"s_mov_b32 {S(dst)}, {S(ptr)}")
        k.I(f"s_mov_b32 {S(dst+1)}, {S(ptr+1)}")
    if size is not None:
        k.I(f"s_mov_b32 {S(dst+2)}, {size}")
    k.I(f"s_mov_b32 {S(dst+3)}, 0x20000")

class Lgk:
    def __init__(self, k, fifo=None):
        self.k = k; self.fifo = list(fifo or [])
    def I(self, text):
        for ln in text.strip().split("\n"):
            ln = ln.strip()
            if not ln: continue
            ins = Ins(ln)
            if ins.op == "s_waitcnt":
                m = re.search(r"lgkmcnt\((\d+)\)", ln)
                if m:
                    n = int(m.group(1)); self.fifo = self.fifo[len(self.fifo) - n:] if n else []
                self.k.I(ln); continue
            use = ins.r | (ins.w if not ins.is_ds else set())
            last = -1
            for i, w in enumerate(self.fifo):
                if w & use: last = i
            if last >= 0:
                n = len(self.fifo) - 1 - last
                assert n <= 15
                self.k.I(f"s_waitcnt lgkmcnt({n})")
                self.fifo = self.fifo[last + 1:]
            self.k.I(ln)
            if ins.is_ds: self.fifo.append(set(ins.w))

def interleave(main, fill, plan):
    out = []; f = list(fill)
    for i, m in enumerate(main):
        out.append(m)
        for _ in range(plan[i] if i < len(plan) else 0):
            if f: out.append(f.pop(0))
    return out + f

def swap23(k, dst, src, tmp):
    k.I(f"""
    v_lshrrev_b32 {V(tmp)}, 1, {V(src)}
    v_xor_b32 {V(tmp)}, {V(tmp)}, {V(src)}
    v_and_b32 {V(tmp)}, 4, {V(tmp)}
    v_mul_u32_u24 {V(tmp)}, 3, {V(tmp)}
    v_xor_b32 {V(dst)}, {V(tmp)}, {V(src)}
    """)

def mod_const(k, dst, src, n, maxv, tmp):
    if dst != src: k.I(f"s_mov_b32 {S(dst)}, {S(src)}")
    m = maxv
    while m > n:
        k.I(f"""
        s_sub_u32 {S(tmp)}, {S(dst)}, {n}
        s_cmp_ge_u32 {S(dst)}, {n}
        s_cselect_b32 {S(dst)}, {S(tmp)}, {S(dst)}
        """)
        m -= n

def R(b, n=1):
    if b < 256:
        assert b + n <= 256
        return V(b, n)
    b -= 256
    return f"a{b}" if n == 1 else f"a[{b}:{b+n-1}]"

class Cnt:
    def __init__(self, k):
        self.k = k; self.vm = []; self.lg = []
    def I(self, text):
        for ln in text.strip().split("\n"):
            ln = ln.strip()
            if not ln: continue
            if ln.endswith(":") or ln.startswith(";"):
                self.k.I(ln); continue
            ins = Ins(ln)
            if ins.op == "s_waitcnt":
                m = re.search(r"lgkmcnt\((\d+)\)", ln)
                if m:
                    n = int(m.group(1)); self.lg = self.lg[max(0, len(self.lg) - n):] if n else []
                m = re.search(r"vmcnt\((\d+)\)", ln)
                if m:
                    n = int(m.group(1)); self.vm = self.vm[max(0, len(self.vm) - n):] if n else []
                self.k.I(ln); continue
            w = []
            for fifo, nm, mx, same in ((self.vm, "vmcnt", 63, ins.is_vmem), (self.lg, "lgkmcnt", 15, ins.is_ds)):
                use = ins.r | (ins.w if not same else set())
                last = -1
                for i, d in enumerate(fifo):
                    if d & use: last = i
                if last >= 0:
                    n = min(len(fifo) - 1 - last, mx)
                    w.append(f"{nm}({n})")
                    del fifo[:len(fifo) - n]
            if w: self.k.I("s_waitcnt " + " ".join(w))
            self.k.I(ln)
            if ins.is_ds: self.lg.append(set(ins.w))
            if ins.is_vmem: self.vm.append(set(ins.w))
```

```python
import sys
from common import *
import importlib
def build(out, which=("k1","k2","k3","k4","k5"), opts=None):
    ks = []; ls = []
    for w in which:
        mod = importlib.import_module({"k1":"k1","k2":"k2","k3":"kg","k4":"kg","k5":"kg","k0":"k0"}[w])
        kk, l = getattr(mod, "gen_"+w)()
        n = sum(1 for x in ks if x.base == kk.name)
        kk.base = kk.name
        if n:
            kk.rename(kk.name.replace("_kernel", f"_r{n}_kernel")); l = (kk.name,) + tuple(l[1:])
        ks.append(kk); ls.append(l)
    hdr = ["; preLN MHA block + SwiGLU FFN, gfx950; generated by my own generator scripts (gen/*.py)"]
    txt = emit_file(hdr, ks, ls)
    open(out, "w").write(txt)
    for kk in ks:
        print(kk.name, "vgpr", kk.maxreg("v")+1, "sgpr", kk.maxreg("s")+1, "nops", kk.nops_inserted, "instrs", sum(1 for x in kk.items if x[0]=="i"))
if __name__ == "__main__":
    if "--prof" in sys.argv: PROF["on"] = True
    build(sys.argv[1], sys.argv[2].split(","))
```

```python
import sys
from common import *
import importlib
def build(out, which=("k1","k2","k3","k4","k5"), opts=None):
    ks = []; ls = []
    for w in which:
        w, _, ev = w.partition(":")
        saved = dict(os.environ)
        for kv in ev.split("+"):
            if kv: os.environ.update([kv.split("=")])
        mod = importlib.import_module({"k1":"k1","k2":"k2","k3":"kg","k4":"kg","k5":"kg","k0":"k0","kb":"kb","ks":"ks"}[w])
        kk, l = getattr(mod, "gen_"+w)()
        os.environ.clear(); os.environ.update(saved)
        n = sum(1 for x in ks if x.base == kk.name)
        kk.base = kk.name
        if n:
            kk.rename(kk.name.replace("_kernel", f"_r{n}_kernel")); l = (kk.name,) + tuple(l[1:])
        ks.append(kk); ls.append(l)
    hdr = ["; preLN MHA block + SwiGLU FFN, gfx950; generated by my own generator scripts (gen/*.py)"]
    txt = emit_file(hdr, ks, ls)
    open(out, "w").write(txt)
    for kk in ks:
        print(kk.name, "vgpr", kk.maxreg("v")+1, "sgpr", kk.maxreg("s")+1, "nops", kk.nops_inserted, "instrs", sum(1 for x in kk.items if x[0]=="i"))
if __name__ == "__main__":
    if "--prof" in sys.argv: PROF["on"] = True
    build(sys.argv[1], sys.argv[2].split(","))
```
